```python
import torch

def _softmax(x, axis=-1):
    return torch.softmax(x, dim=axis)
def _gelu(x):
    return torch.nn.functional.gelu(x, approximate="tanh")
def _silu(x):
    return torch.nn.functional.silu(x)
def _sigmoid(x):
    return torch.sigmoid(x)
def _layernorm(x, axis=-1, eps=1e-5):
    m = x.mean(dim=axis, keepdim=True)
    v = x.var(dim=axis, keepdim=True, unbiased=False)
    return (x - m) / torch.sqrt(v + eps)
def _scatter_add(tgt, idx, src, axis=0):
    return tgt.clone().index_add_(axis, idx, src)
def _segment_sum(src, seg, n):
    out = torch.zeros((n,) + src.shape[1:], dtype=src.dtype)
    return out.index_add_(0, seg, src)
def _pad(x, pw):
    flat = tuple(v for pair in reversed(pw) for v in pair)
    return torch.nn.functional.pad(x, flat)

kernel_name = 'standalone__mha_block_cached__near_ridge'

def setup_inputs():

    _w = (lambda a: (lambda t: t.to(torch.bfloat16) if t.is_floating_point() else t)(torch.as_tensor(a)))
    B, Sq, D = 8, 192, 640
    H, Sk, Dh = 32, 512, 128
    return {
        "x": _w((lambda *s: torch.randn(*s, dtype=torch.bfloat16) * 0.8)(B, Sq, D)),
        "k_cache": _w((lambda *s: torch.randn(*s, dtype=torch.bfloat16) * 0.8)(B, H, Sk, Dh)),
        "v_cache": _w((lambda *s: torch.randn(*s, dtype=torch.bfloat16) * 0.05)(B, H, Sk, Dh)),
        "wq": _w((lambda *s: torch.randn(*s, dtype=torch.bfloat16) * 0.8)(D, H * Dh) * (D ** -0.5)),
        "wo": _w((lambda *s: torch.randn(*s, dtype=torch.bfloat16) * 0.05)(H * Dh, D) * ((H * Dh) ** -0.5)),
    }

def reference(x, k_cache, v_cache, wq, wo):
    B, Sq, D = x.shape
    H, Dh = 32, 128
    q = (lambda x, *d: x.permute(*d))((x @ wq).reshape(B, Sq, H, Dh), 0, 2, 1, 3)
    scores = torch.einsum("bhqd,bhkd->bhqk", q, k_cache) * (Dh ** -0.5)
    p = _softmax(scores, axis=-1)
    o = torch.einsum("bhqk,bhkd->bhqd", p, v_cache)
    return (lambda x, *d: x.permute(*d))(o, 0, 2, 1, 3).reshape(B, Sq, H * Dh) @ wo
```

```python
import re

def R(kind, lo, n=1):
    return (kind, lo, n)
def v(lo, n=1): return ('v', lo, n)
def a(lo, n=1): return ('a', lo, n)
def s(lo, n=1): return ('s', lo, n)

def fmt(r):
    if isinstance(r, str): return r
    if isinstance(r, (int,)): return str(r)
    if isinstance(r, float): return repr(r)
    k, lo, n = r
    if n == 1: return f"{k}{lo}"
    return f"{k}[{lo}:{lo+n-1}]"

def regs(r):
    if isinstance(r, tuple):
        k, lo, n = r
        return [(k, lo+i) for i in range(n)]
    return []

TRANS = ("v_exp_f32", "v_log_f32", "v_rcp_f32", "v_rsq_f32", "v_sqrt_f32", "v_sin_f32", "v_cos_f32")

class Asm:
    def __init__(self):
        self.lines = []
        self.t = 0
        self.w = {}
        self.rd_c = {}
        self.st = {}
        self.m0t = -100
        self.nops = 0
    def raw(self, text, ws=1):
        self.lines.append("  " + text)
        self.t += ws
    def comment(self, text):
        self.lines.append("  ; " + text)
    def label(self, name):
        self.lines.append(name + ":")
    def nop(self, n):
        while n > 0:
            k = min(n, 16)
            self.lines.append(f"  s_nop {k-1}")
            self.t += k; n -= k; self.nops += 1
    def fence(self, n=20):
        self.nop(n)
    def _need(self, req):
        if req > self.t:
            self.nop(req - self.t)
    def _check_reads(self, srcs, consumer):
        req = 0
        for r in srcs:
            for g in regs(r):
                if g in self.w:
                    t, kind, extra = self.w[g]
                    d = 0
                    if kind == 'mfma':
                        passes = extra
                        if consumer == 'mfma_c_same': d = 0
                        elif consumer == 'mfma_c': d = {4:6, 8:10}[passes]
                        else: d = {4:8, 8:12}[passes]
                    elif kind in ('valu', 'trans'):
                        if consumer.startswith('mfma'): d = 2
                        elif consumer == 'permlane': d = 2
                        elif consumer == 'dpp': d = 2
                        elif consumer == 'readlane': d = 1
                        elif consumer == 'valu' and kind == 'trans': d = 1
                        if g[0] == 's':
                            if consumer in ('valu', 'trans', 'permlane', 'dpp'): d = max(d, 2)
                            if consumer == 'vmem': d = 5
                            if consumer == 'readlane': d = 4
                    req = max(req, t + 1 + d)
        return req
    def _check_writes(self, dsts, writer):
        req = 0
        for r in dsts:
            for g in regs(r):
                if g in self.w:
                    t, kind, extra = self.w[g]
                    if kind == 'mfma' and writer != 'mfma':
                        req = max(req, t + 1 + {4:8, 8:12}[extra])
                if g in self.rd_c and writer in ('valu', 'trans', 'load'):
                    t, passes = self.rd_c[g]
                    req = max(req, t + 1 + {4:3, 8:7}[passes])
                if g in self.st:
                    req = max(req, self.st[g] + 1 + 2)
        return req
    def _record(self, dsts, kind, extra=None):
        for r in dsts:
            for g in regs(r):
                self.w[g] = (self.t, kind, extra)
    def valu(self, op, dst, *srcs, mods=""):
        kind = 'trans' if op in TRANS else 'valu'
        cons = kind
        if op.startswith("v_permlane"): cons = 'permlane'
        if op.startswith("v_readlane") or op.startswith("v_readfirstlane"): cons = 'readlane'
        dsts = [dst]
        rs = [x[1] if (isinstance(x, tuple) and x[0] == 'neg') else x for x in srcs]
        if op.startswith("v_permlane"):
            dsts = [dst, srcs[0]]; rs = [dst, srcs[0]]
        if op.startswith("v_fmac"): rs = rs + [dst]
        if op.startswith("v_cndmask") and len(srcs) == 3 and srcs[2] == 'vcc': rs = rs[:2] + [('s', 106, 2)]
        if dst == 'vcc': dsts = [('s', 106, 2)]
        req = max(self._check_reads(rs, cons), self._check_writes(dsts, kind))
        self._need(req)
        def f(x):
            if isinstance(x, tuple) and x[0] == 'neg': return "-" + fmt(x[1])
            return fmt(x)
        self.lines.append(f"  {op} {fmt(dst)}, " + ", ".join(f(x) for x in srcs) + (" " + mods if mods else ""))
        self._record(dsts, kind)
        self.t += 1
    def mfma(self, shape, d, A, B, C):
        passes = 8 if shape == 32 else 4
        op = "v_mfma_f32_32x32x16_bf16" if shape == 32 else "v_mfma_f32_16x16x32_bf16"
        req = self._check_reads([A, B], 'mfma_ab')
        if isinstance(C, tuple):
            same = all(self.w.get(g, (0, None, None))[1] != 'mfma' or True for g in regs(C))
            req = max(req, self._check_reads([C], 'mfma_c_same' if C == d else 'mfma_c'))
        req = max(req, self._check_writes([d], 'mfma'))
        self._need(req)
        self.lines.append(f"  {op} {fmt(d)}, {fmt(A)}, {fmt(B)}, {fmt(C)}")
        if isinstance(C, tuple):
            for g in regs(C): self.rd_c[g] = (self.t, passes)
        self._record([d], 'mfma', passes)
        self.t += 1
    def ds_read(self, op, dst, addr, offset=0):
        req = max(self._check_reads([addr], 'vmem'), self._check_writes([dst], 'load'))
        self._need(req)
        self.lines.append(f"  {op} {fmt(dst)}, {fmt(addr)}" + (f" offset:{offset}" if offset else ""))
        self._record([dst], 'load'); self.t += 1
    def ds_write(self, op, addr, data, offset=0):
        req = self._check_reads([addr, data], 'vmem')
        self._need(req)
        self.lines.append(f"  {op} {fmt(addr)}, {fmt(data)}" + (f" offset:{offset}" if offset else ""))
        for g in regs(data): self.st[g] = self.t
        self.t += 1
    def buf_load(self, op, dst, voff, srd, soff, offset=0, extra=""):
        req = max(self._check_reads([voff, srd, soff], 'vmem'), self._check_writes([dst], 'load'))
        self._need(req)
        self.lines.append(f"  {op} {fmt(dst)}, {fmt(voff)}, {fmt(srd)}, {fmt(soff)} offen" + (f" offset:{offset}" if offset else "") + (" " + extra if extra else ""))
        self._record([dst], 'load'); self.t += 1
    def buf_load_lds(self, voff, srd, soff, offset=0, extra=""):
        req = max(self._check_reads([voff, srd, soff], 'vmem'), self.m0t + 2)
        self._need(req)
        self.lines.append(f"  buffer_load_dwordx4 {fmt(voff)}, {fmt(srd)}, {fmt(soff)} offen" + (f" offset:{offset}" if offset else "") + (" " + extra if extra else "") + " lds")
        self.t += 1
    def buf_store(self, op, data, voff, srd, soff, offset=0, extra=""):
        req = self._check_reads([data, voff, srd, soff], 'vmem')
        self._need(req)
        self.lines.append(f"  {op} {fmt(data)}, {fmt(voff)}, {fmt(srd)}, {fmt(soff)} offen" + (f" offset:{offset}" if offset else "") + (" " + extra if extra else ""))
        for g in regs(data): self.st[g] = self.t
        self.t += 1
    def salu(self, op, dst, *srcs):
        self.lines.append(f"  {op} {fmt(dst)}" + ("".join(", " + fmt(x) for x in srcs)))
        if dst == 'm0': self.m0t = self.t
        else: self._record([dst] if isinstance(dst, tuple) else [], 'salu')
        self.t += 1
    def wait(self, vm=None, lgkm=None):
        p = []
        if vm is not None: p.append(f"vmcnt({vm})")
        if lgkm is not None: p.append(f"lgkmcnt({lgkm})")
        self.raw("s_waitcnt " + " ".join(p))
    def barrier(self): self.raw("s_barrier")
    def text(self): return "\n".join(self.lines) + "\n"

def kd(name, vgpr, accum, sgpr=102):
    return f""".p2align 6
.amdhsa_kernel {name}
  .amdhsa_next_free_vgpr {vgpr}
  .amdhsa_next_free_sgpr {sgpr}
  .amdhsa_accum_offset {accum}
  .amdhsa_group_segment_fixed_size 0
  .amdhsa_kernarg_size 64
  .amdhsa_user_sgpr_count 2
  .amdhsa_user_sgpr_kernarg_segment_ptr 1
  .amdhsa_system_sgpr_workgroup_id_x 1
.end_amdhsa_kernel
"""
```

```python
import sys, struct
from asmlib import *

def f32bits(x): return struct.unpack("<I", struct.pack("<f", x))[0]
CSCALE = (128 ** -0.5) * 1.4426950408889634

def merge(A, M, V, lead=0):
    nm = sum(1 for x in M if x[0])
    vi = 0; seen = 0
    for _ in range(min(lead, len(V))):
        V[vi](); vi += 1
    rem0 = len(V) - vi
    for ism, fn in M:
        fn()
        if ism:
            seen += 1
            tgt = (len(V) - rem0) + (rem0 * seen + nm - 1) // nm if nm else len(V)
            while vi < min(tgt, len(V)):
                V[vi](); vi += 1
    while vi < len(V):
        V[vi](); vi += 1

def kernel1():
    A = Asm()
    name = "attn_kernel"
    A.lines.append(f".p2align 8\n{name}:")
    A.raw("s_cmp_ge_u32 s2, 256")
    A.raw("s_cbranch_scc1 L_attn_end")
    A.raw("s_load_dwordx4 s[4:7], s[0:1], 0")
    A.raw("s_load_dwordx4 s[8:11], s[0:1], 16")
    A.raw("s_load_dwordx2 s[12:13], s[0:1], 56")
    A.salu("s_and_b32", s(14), s(2), 7)
    A.salu("s_lshr_b32", s(15), s(2), 3)
    A.salu("s_and_b32", s(16), s(14), 1)
    A.salu("s_lshl_b32", s(16), s(16), 2)
    A.salu("s_and_b32", s(17), s(15), 3)
    A.salu("s_add_u32", s(16), s(16), s(17))
    A.salu("s_lshr_b32", s(17), s(14), 1)
    A.salu("s_lshl_b32", s(17), s(17), 3)
    A.salu("s_lshr_b32", s(18), s(15), 2)
    A.salu("s_add_u32", s(17), s(17), s(18))
    LANE, WV = v(1), v(2)
    A.valu("v_and_b32", LANE, 63, v(0))
    A.valu("v_lshrrev_b32", WV, 6, v(0))
    A.valu("v_readfirstlane_b32", s(19), WV)
    A.wait(lgkm=0)
    SX, SWQ, SK, SV, SO = s(20,4), s(24,4), s(28,4), s(32,4), s(36,4)
    A.salu("s_mul_i32", s(40), s(16), 245760)
    A.salu("s_add_u32", s(20), s(4), s(40)); A.salu("s_addc_u32", s(21), s(5), 0)
    A.salu("s_mov_b32", s(22), 245760); A.salu("s_mov_b32", s(23), 0x20000)
    A.salu("s_lshl_b32", s(40), s(17), 8)
    A.salu("s_add_u32", s(24), s(10), s(40)); A.salu("s_addc_u32", s(25), s(11), 0)
    A.salu("s_sub_u32", s(26), 5242880, s(40)); A.salu("s_mov_b32", s(27), 0x20000)
    A.salu("s_lshl_b32", s(41), s(16), 5); A.salu("s_add_u32", s(41), s(41), s(17)); A.salu("s_lshl_b32", s(41), s(41), 17)
    A.salu("s_add_u32", s(28), s(6), s(41)); A.salu("s_addc_u32", s(29), s(7), 0)
    A.salu("s_mov_b32", s(30), 131072); A.salu("s_mov_b32", s(31), 0x20000)
    A.salu("s_add_u32", s(32), s(8), s(41)); A.salu("s_addc_u32", s(33), s(9), 0)
    A.salu("s_mov_b32", s(34), 131072); A.salu("s_mov_b32", s(35), 0x20000)
    A.salu("s_mul_i32", s(41), s(16), 192*8192); A.salu("s_add_u32", s(41), s(41), s(40))
    A.salu("s_add_u32", s(36), s(12), s(41)); A.salu("s_addc_u32", s(37), s(13), 0)
    A.salu("s_sub_u32", s(38), 192*8192, s(40)); A.salu("s_mov_b32", s(39), 0x20000)
    A.salu("s_mov_b32", s(42), f32bits(CSCALE))
    SC = s(42)
    L15, G, RR, C3 = v(3), v(4), v(5), v(6)
    A.valu("v_and_b32", L15, 15, LANE)
    A.valu("v_lshrrev_b32", G, 4, LANE)
    A.valu("v_bfe_u32", RR, LANE, 2, 2)
    A.valu("v_and_b32", C3, 3, LANE)
    XOFF = v(7)
    A.valu("v_mul_u32_u24", v(8), 48, WV)
    A.valu("v_add_u32", v(8), v(8), L15)
    A.salu("s_mov_b32", s(43), 1280)
    A.valu("v_mul_lo_u32", XOFF, v(8), s(43))
    A.valu("v_lshl_add_u32", XOFF, G, 4, XOFF)
    A.salu("s_mov_b32", s(44), 20480); A.salu("s_mov_b32", s(45), 40960)
    for ks in range(20):
        for j in range(3):
            A.buf_load("buffer_load_dwordx4", a((ks*3+j)*4, 4), XOFF, SX, [0, s(44), s(45)][j], offset=64*ks)
    OOFF = v(9)
    A.valu("v_lshlrev_b32", OOFF, 13, v(8))
    A.valu("v_lshl_add_u32", OOFF, G, 3, OOFF)
    E = v(10)
    A.valu("v_and_b32", E, 1, WV)
    KVOFF = v(11)
    A.valu("v_lshl_add_u32", v(12), E, 2, G)
    A.valu("v_lshlrev_b32", v(13), 1, v(12))
    A.valu("v_xor_b32", v(13), v(13), L15)
    A.valu("v_lshlrev_b32", v(13), 4, v(13))
    A.valu("v_lshl_add_u32", KVOFF, v(12), 8, v(13))
    WQOFF = v(12)
    A.valu("v_and_b32", v(13), 1, G)
    A.valu("v_lshl_add_u32", v(13), E, 1, v(13))
    A.valu("v_lshlrev_b32", v(13), 2, v(13))
    A.valu("v_xor_b32", v(13), v(13), L15)
    A.valu("v_lshlrev_b32", v(13), 4, v(13))
    A.valu("v_lshl_add_u32", WQOFF, G, 13, v(13))
    STG = 7*16384
    WQA = [v(208+i) for i in range(4)]
    A.valu("v_lshl_add_u32", v(13), G, 3, RR)
    A.valu("v_lshlrev_b32", v(13), 8, v(13))
    A.valu("v_lshl_add_u32", v(13), C3, 4, v(13))
    A.valu("v_add_u32", v(13), STG, v(13))
    A.valu("v_and_b32", v(14), 1, RR)
    A.valu("v_and_b32", v(15), 1, G)
    A.valu("v_lshl_add_u32", v(14), v(15), 1, v(14))
    A.valu("v_lshl_add_u32", v(13), v(14), 6, v(13))
    for B in range(4):
        A.valu("v_xor_b32", WQA[B], 64*B, v(13))
    KB = v(212)
    A.valu("v_and_b32", v(13), 7, LANE)
    A.valu("v_lshlrev_b32", v(13), 1, v(13))
    A.valu("v_xor_b32", v(13), v(13), G)
    A.valu("v_lshlrev_b32", v(13), 4, v(13))
    A.valu("v_lshl_add_u32", KB, L15, 8, v(13))
    VB = v(213)
    A.valu("v_lshl_add_u32", v(13), G, 2, RR)
    A.valu("v_lshlrev_b32", VB, 8, v(13))
    A.valu("v_and_b32", v(13), 7, v(13))
    A.valu("v_lshl_add_u32", VB, v(13), 5, VB)
    A.valu("v_lshl_add_u32", VB, C3, 3, VB)
    ONES = v(248, 4)
    for i in range(4): A.valu("v_mov_b32", v(248+i), 0x3F803F80)

    tiles = [('K',0),('K',1)]
    for j in range(6): tiles += [('V',j),('K',j+2)]
    tiles += [('V',6),('V',7)]
    assert len(tiles) == 16
    slot = lambda i: i if i < 10 else i - 10
    def issue_kv(i, pps, mbase_s):
        kind, j = tiles[i]
        srd = SK if kind == 'K' else SV
        for pp in pps[::2]:
            A.salu("s_add_u32", 'm0', mbase_s, slot(i)*16384 + pp*2048)
            A.salu("s_mov_b32", s(47), j*16384 + pp*2048)
            A.buf_load_lds(KVOFF, srd, s(47))
            A.buf_load_lds(KVOFF, srd, s(47), offset=2048)
    A.salu("s_and_b32", s(46), s(19), 1); A.salu("s_lshl_b32", s(46), s(46), 10)
    A.salu("s_lshr_b32", s(48), s(19), 1); A.salu("s_lshl_b32", s(48), s(48), 13)
    A.salu("s_add_u32", s(49), s(48), s(46))
    def issue_refill(i):
        kind, j = tiles[i]
        srd = SK if kind == 'K' else SV
        for pp in (0, 2):
            A.salu("s_add_u32", 'm0', s(49), slot(i)*16384 + pp*2048)
            A.salu("s_add_u32", s(47), s(48), j*16384 + pp*2048)
            A.buf_load_lds(KVOFF, srd, s(47))
            A.buf_load_lds(KVOFF, srd, s(47), offset=2048)
    def issue_wq(c):
        for q in range(4):
            for t in range(2):
                p0 = 4*q + t
                A.salu("s_add_u32", 'm0', s(50), STG + (c%3)*16384 + p0*1024)
                A.salu("s_add_u32", s(47), s(51), (64*c + 4*p0)*8192)
                A.buf_load_lds(WQOFF, SWQ, s(47))
    A.salu("s_lshl_b32", s(50), s(46), 1)
    A.salu("s_lshl_b32", s(51), s(46), 6)
    A.raw("s_cmp_ge_u32 s19, 2")
    A.raw("s_cbranch_scc1 L_attn_wqinit")
    for i in range(7): issue_kv(i, list(range(8)), s(46))
    A.raw("s_branch L_attn_initdone")
    A.label("L_attn_wqinit")
    issue_wq(0); issue_wq(1)
    A.label("L_attn_initdone")
    A.fence(4)

    SB = 16
    QF = 112
    FB = 160
    NFB = 12
    def qacc(i, B, U): return v(SB + ((i*4 + B)*2 + U)*4, 4)
    for c in range(10):
        A.raw("s_cmp_ge_u32 s19, 2")
        A.raw(f"s_cbranch_scc1 L_attn_wa{c}")
        nx = 56 + 60 - 6*(c+1)
        A.wait(vm=min(63, nx))
        A.raw(f"s_branch L_attn_wb{c}")
        A.label(f"L_attn_wa{c}")
        A.wait(vm=8 if c < 9 else 0)
        A.label(f"L_attn_wb{c}")
        A.barrier()
        if c + 2 < 10:
            A.raw("s_cmp_lt_u32 s19, 2")
            A.raw(f"s_cbranch_scc1 L_attn_wc{c}")
            issue_wq(c+2)
            A.label(f"L_attn_wc{c}")
        fl = [(ks, B, U) for ks in range(2) for B in range(4) for U in range(2)]
        PD = 5
        def rd(n):
            ks, B, U = fl[n]
            fr = FB + (n % NFB)*4
            off = (c%3)*16384 + ks*8192 + 8*U
            A.ds_read("ds_read_b64_tr_b16", v(fr, 2), WQA[B], off)
            A.ds_read("ds_read_b64_tr_b16", v(fr+2, 2), WQA[B], off + 1024)
        for n in range(PD): rd(n)
        for n in range(16):
            if n + PD < 16: rd(n + PD)
            outstanding = min(16, n + PD + 1) - (n + 1)
            A.wait(lgkm=2*outstanding)
            ks, B, U = fl[n]
            fr = v(FB + (n % NFB)*4, 4)
            gks = 2*c + ks
            for i in range(3):
                d = qacc(i, B, U)
                A.mfma(16, d, fr, a((gks*3+i)*4, 4), d if gks > 0 else 0)
    for i in range(3):
        for B in range(4):
            for U in range(2):
                q = qacc(i, B, U)
                for hh in range(2):
                    A.valu("v_cvt_pk_bf16_f32", v(QF + (i*4+B)*4 + U*2 + hh), v(q[1]+2*hh), v(q[1]+2*hh+1))
    def Sreg(buf, i, kt): return v(SB + buf*48 + i*16 + kt*4, 4)
    def Preg(buf, i, ks): return v(SB + buf*48 + i*16 + ks*4, 4)
    def Oreg(i, u): return a((i*8+u)*4, 4)
    def Lreg(i): return a(96 + i*4, 4)
    KA = [v(214+i) for i in range(4)]
    VA = [v(218+i) for i in range(8)]
    MC = [v(226+i) for i in range(3)]
    AL = [v(229+i) for i in range(3)]
    T = [v(232+i) for i in range(12)]
    FLAG = s(52, 2)
    issued = [8]*7
    state = {'next_issue': 7}
    def pre_step(cidx, M):
        def fn():
            after = sum(issued[cidx+1:])
            A.wait(vm=min(63, after))
            A.barrier()
            if cidx == 0:
                for i in (7, 8, 9):
                    issue_refill(i); issued.append(4)
            elif cidx - 1 + 10 <= 15:
                issue_refill(cidx - 1 + 10); issued.append(4)
        M.append((False, fn))
    fcount = [0]
    def qk_stream(cidx, j):
        M = []
        pre_step(cidx, M)
        buf = j & 1
        sl = slot(cidx)*16384
        def addr():
            A.valu("v_add_u32", KA[0], sl, KB)
            for ks in range(1, 4): A.valu("v_xor_b32", KA[ks], 64*ks, KA[0])
        M.append((False, addr))
        fl = [(kt, ks) for kt in range(4) for ks in range(4)]
        PD = 4
        base = fcount[0]
        def rd(n):
            kt, ks = fl[n]
            A.ds_read("ds_read_b128", v(FB + ((base+n) % NFB)*4, 4), KA[ks], kt*4096)
        for n in range(PD): M.append((False, lambda n=n: rd(n)))
        for n in range(16):
            if n + PD < 16: M.append((False, lambda n=n: rd(n+PD)))
            outstanding = min(16, n + PD + 1) - (n + 1)
            M.append((False, lambda o=outstanding: A.wait(lgkm=o)))
            kt, ks = fl[n]
            for i in range(3):
                d = Sreg(buf, i, kt)
                M.append((True, lambda d=d, n=n, i=i, ks=ks: A.mfma(16, d, v(FB + ((base+n) % NFB)*4, 4), v(QF + (i*4+ks)*4, 4), d if ks > 0 else 0)))
        fcount[0] += 16
        return M
    def pv_stream(cidx, j):
        M = []
        pre_step(cidx, M)
        buf = j & 1
        sl = slot(cidx)*16384
        def addr():
            A.valu("v_add_u32", VA[0], sl, VB)
            for u in range(1, 8): A.valu("v_xor_b32", VA[u], 32*u, VA[0])
        M.append((False, addr))
        fl = [(ks, u) for ks in range(2) for u in range(8)]
        PD = 4
        base = fcount[0]
        def rd(n):
            ks, u = fl[n]
            fr = FB + ((base+n) % NFB)*4
            A.ds_read("ds_read_b64_tr_b16", v(fr, 2), VA[u], ks*8192)
            A.ds_read("ds_read_b64_tr_b16", v(fr+2, 2), VA[u], ks*8192 + 4096)
        for n in range(PD): M.append((False, lambda n=n: rd(n)))
        for ks in range(2):
            for i in range(3):
                d = Lreg(i)
                M.append((True, lambda d=d, i=i, ks=ks: A.mfma(16, d, ONES, Preg(buf, i, ks), d if (j > 0 or ks > 0) else 0)))
        for n in range(16):
            if n + PD < 16: M.append((False, lambda n=n: rd(n+PD)))
            outstanding = min(16, n + PD + 1) - (n + 1)
            M.append((False, lambda o=outstanding: A.wait(lgkm=2*o)))
            ks, u = fl[n]
            for i in range(3):
                d = Oreg(i, u)
                M.append((True, lambda d=d, n=n, i=i, ks=ks: A.mfma(16, d, v(FB + ((base+n) % NFB)*4, 4), Preg(buf, i, ks), d if (j > 0 or ks > 0) else 0)))
        fcount[0] += 16
        return M
    def sm_stream(j):
        buf = j & 1
        V = []
        def op(*args, **kw): V.append(lambda: A.valu(*args, **kw))
        if j > 0: V.append(lambda: A.salu("s_mov_b64", FLAG, 0))
        for i in range(3):
            b0 = SB + buf*48 + i*16
            t0, t1, t2 = T[i*4], T[i*4+1], T[i*4+2]
            op("v_max3_f32", t0, v(b0), v(b0+1), v(b0+2))
            for n in range(6): op("v_max3_f32", t0, t0, v(b0+3+2*n), v(b0+4+2*n))
            op("v_max_f32", t0, t0, v(b0+15))
        for i in range(3):
            t0, t1 = T[i*4], T[i*4+1]
            op("v_mov_b32", t1, t0)
        for i in range(3):
            t0, t1 = T[i*4], T[i*4+1]
            op("v_permlane32_swap_b32", t0, t1)
        for i in range(3):
            t0, t1 = T[i*4], T[i*4+1]
            op("v_max_f32", t0, t0, t1)
            op("v_mov_b32", t1, t0)
        for i in range(3):
            t0, t1 = T[i*4], T[i*4+1]
            op("v_permlane16_swap_b32", t0, t1)
        for i in range(3):
            t0, t1, t2 = T[i*4], T[i*4+1], T[i*4+2]
            op("v_max_f32", t0, t0, t1)
            if j == 0:
                op("v_mul_f32", MC[i], SC, t0)
            else:
                op("v_mul_f32", t0, SC, t0)
                op("v_sub_f32", t1, t0, MC[i])
                op("v_cmp_lt_f32", 'vcc', 0x41000000, t1)
                V.append(lambda: A.salu("s_or_b64", FLAG, FLAG, 'vcc'))
                op("v_cndmask_b32", t2, MC[i], t0, 'vcc')
                op("v_sub_f32", t1, MC[i], t2)
                op("v_exp_f32", AL[i], t1)
                op("v_mov_b32", MC[i], t2)
        for i in range(3):
            b0 = SB + buf*48 + i*16
            for n in range(16):
                op("v_fma_f32", v(b0+n), v(b0+n), SC, ('neg', MC[i]))
                if n >= 1: op("v_exp_f32", v(b0+n-1), v(b0+n-1))
                if n >= 3 and n % 2 == 1:
                    k = (n-3)//2
                    op("v_cvt_pk_bf16_f32", v(b0+k), v(b0+2*k), v(b0+2*k+1))
            op("v_exp_f32", v(b0+15), v(b0+15))
            op("v_cvt_pk_bf16_f32", v(b0+7), v(b0+14), v(b0+15))
        return V
    def rescale(j):
        A.raw("s_cmp_eq_u64 s[52:53], 0")
        A.raw(f"s_cbranch_scc1 L_attn_nors{j}")
        A.fence(10)
        for i in range(3):
            regs_ = [Oreg(i, u) for u in range(8)] + [Lreg(i)]
            for r in regs_:
                for e in range(4):
                    A.valu("v_accvgpr_read_b32", T[e], a(r[1]+e))
                for e in range(4):
                    A.valu("v_mul_f32", T[e], T[e], AL[i])
                for e in range(4):
                    A.valu("v_accvgpr_write_b32", a(r[1]+e), T[e])
        A.fence(4)
        A.label(f"L_attn_nors{j}")
        A.fence(2)
    merge(A, qk_stream(0, 0), [])
    merge(A, qk_stream(1, 1), sm_stream(0), lead=0)
    cidx = 2
    for j in range(7):
        V = sm_stream(j+1)
        if j >= 1: rescale(j)
        if j < 6:
            h = len(V)//2
            merge(A, pv_stream(cidx, j), V[:h]); cidx += 1
            merge(A, qk_stream(cidx, j+2), V[h:]); cidx += 1
        else:
            merge(A, pv_stream(cidx, j), V); cidx += 1
    rescale(7)
    merge(A, pv_stream(cidx, 7), []); cidx += 1
    assert cidx == 16
    A.salu("s_mov_b32", s(44), 131072); A.salu("s_mov_b32", s(45), 262144)
    for i in range(3):
        A.valu("v_accvgpr_read_b32", T[8], a(Lreg(i)[1]))
        A.valu("v_rcp_f32", T[8], T[8])
        for u in range(8):
            o = Oreg(i, u)
            tb = 16 + ((i*8+u) % 8)*8
            for e in range(4): A.valu("v_accvgpr_read_b32", v(tb+e), a(o[1]+e))
            for e in range(4): A.valu("v_mul_f32", v(tb+e), v(tb+e), T[8])
            A.valu("v_cvt_pk_bf16_f32", v(tb+4), v(tb), v(tb+1))
            A.valu("v_cvt_pk_bf16_f32", v(tb+5), v(tb+2), v(tb+3))
            A.buf_store("buffer_store_dwordx2", v(tb+4, 2), OOFF, SO, [0, s(44), s(45)][i], offset=32*u)
    A.label("L_attn_end")
    A.raw("s_endpgm")
    return A, name

def kernel2():
    A = Asm()
    name = "oproj_kernel"
    A.lines.append(f".p2align 8\n{name}:")
    A.raw("s_cmp_ge_u32 s2, 240")
    A.raw("s_cbranch_scc1 L_op_end")
    A.raw("s_load_dwordx4 s[4:7], s[0:1], 32")
    A.raw("s_load_dwordx2 s[8:9], s[0:1], 56")
    A.salu("s_and_b32", s(10), s(2), 7)
    A.salu("s_lshr_b32", s(11), s(2), 3)
    A.salu("s_mul_i32", s(12), s(11), 43); A.salu("s_lshr_b32", s(12), s(12), 8)
    A.salu("s_mul_i32", s(13), s(12), 6); A.salu("s_sub_u32", s(13), s(11), s(13))
    A.salu("s_lshr_b32", s(14), s(10), 1); A.salu("s_mul_i32", s(14), s(14), 6); A.salu("s_add_u32", s(14), s(14), s(13))
    A.salu("s_and_b32", s(15), s(10), 1); A.salu("s_mul_i32", s(15), s(15), 5); A.salu("s_add_u32", s(15), s(15), s(12))
    LANE, WV = v(1), v(2)
    A.valu("v_and_b32", LANE, 63, v(0))
    A.valu("v_lshrrev_b32", WV, 6, v(0))
    A.valu("v_readfirstlane_b32", s(19), WV)
    A.wait(lgkm=0)
    SA, SB_, SO = s(20,4), s(24,4), s(28,4)
    A.salu("s_lshl_b32", s(16), s(14), 19)
    A.salu("s_add_u32", s(20), s(8), s(16)); A.salu("s_addc_u32", s(21), s(9), 0)
    A.salu("s_mov_b32", s(22), 64*8192); A.salu("s_mov_b32", s(23), 0x20000)
    A.salu("s_lshl_b32", s(16), s(15), 7)
    A.salu("s_add_u32", s(24), s(4), s(16)); A.salu("s_addc_u32", s(25), s(5), 0)
    A.salu("s_sub_u32", s(26), 5242880, s(16)); A.salu("s_mov_b32", s(27), 0x20000)
    A.salu("s_mul_i32", s(17), s(14), 64*1280); A.salu("s_add_u32", s(17), s(17), s(16))
    A.salu("s_add_u32", s(28), s(6), s(17)); A.salu("s_addc_u32", s(29), s(7), 0)
    A.salu("s_sub_u32", s(30), 64*1280, s(16)); A.salu("s_mov_b32", s(31), 0x20000)
    AOFF, BOFF = v(3), v(4)
    A.valu("v_lshrrev_b32", v(5), 4, LANE)
    A.valu("v_and_b32", v(6), 15, LANE)
    A.valu("v_lshl_add_u32", v(7), WV, 2, v(5))
    A.valu("v_and_b32", v(8), 15, v(7))
    A.valu("v_xor_b32", v(8), v(8), v(6))
    A.valu("v_lshlrev_b32", v(8), 4, v(8))
    A.valu("v_lshl_add_u32", AOFF, v(7), 13, v(8))
    A.valu("v_lshrrev_b32", v(5), 3, LANE)
    A.valu("v_and_b32", v(6), 7, LANE)
    A.valu("v_lshl_add_u32", v(7), WV, 3, v(5))
    A.salu("s_mov_b32", s(32), 1280)
    A.valu("v_mul_lo_u32", BOFF, v(7), s(32))
    A.valu("v_bfe_u32", v(8), v(5), 1, 1)
    A.valu("v_lshlrev_b32", v(8), 2, v(8))
    A.valu("v_xor_b32", v(8), v(8), v(6))
    A.valu("v_lshl_add_u32", BOFF, v(8), 4, BOFF)
    MH, NH, KH = v(9), v(10), v(11)
    A.valu("v_and_b32", MH, 1, WV)
    A.valu("v_bfe_u32", NH, WV, 1, 1)
    A.valu("v_lshrrev_b32", KH, 2, WV)
    OA = [v(12+i) for i in range(4)]
    A.valu("v_and_b32", v(5), 31, LANE)
    A.valu("v_lshl_add_u32", v(5), MH, 5, v(5))
    A.valu("v_lshrrev_b32", v(6), 5, LANE)
    A.valu("v_and_b32", v(7), 15, LANE)
    A.valu("v_xor_b32", v(6), v(6), v(7))
    A.valu("v_lshlrev_b32", v(7), 3, KH)
    A.valu("v_xor_b32", v(6), v(6), v(7))
    A.valu("v_lshlrev_b32", v(6), 4, v(6))
    A.valu("v_lshl_add_u32", OA[0], v(5), 8, v(6))
    for i in range(1, 4): A.valu("v_xor_b32", OA[i], 32*i, OA[0])
    WA = v(16)
    A.valu("v_lshrrev_b32", v(5), 5, LANE)
    A.valu("v_bfe_u32", v(6), LANE, 2, 2)
    A.valu("v_lshl_add_u32", v(5), v(5), 3, v(6))
    A.valu("v_lshl_add_u32", v(5), KH, 6, v(5))
    A.valu("v_bfe_u32", v(7), LANE, 4, 1)
    A.valu("v_bfe_u32", v(8), LANE, 1, 1)
    A.valu("v_lshl_add_u32", v(7), v(7), 1, v(8))
    A.valu("v_lshl_add_u32", v(7), NH, 2, v(7))
    A.valu("v_bfe_u32", v(8), LANE, 3, 1)
    A.valu("v_lshlrev_b32", v(8), 2, v(8))
    A.valu("v_xor_b32", v(7), v(7), v(8))
    A.valu("v_lshlrev_b32", v(7), 4, v(7))
    A.valu("v_lshl_add_u32", WA, v(5), 7, v(7))
    A.valu("v_and_b32", v(8), 1, LANE)
    A.valu("v_lshl_add_u32", WA, v(8), 3, WA)
    A.valu("v_add_u32", WA, 65536, WA)
    ACC = v(32, 16)
    for i in range(16): A.valu("v_mov_b32", v(32+i), 0)
    A.salu("s_lshl_b32", s(33), s(19), 10)
    A.salu("s_mov_b32", s(34), 0)
    A.salu("s_mov_b32", s(35), 0)
    def issue(stage):
        A.salu("s_add_u32", 'm0', s(33), stage*16384)
        A.salu("s_add_u32", s(36), s(34), 262144)
        A.buf_load_lds(AOFF, SA, s(34))
        A.salu("s_add_u32", 'm0', s(33), stage*16384 + 8192)
        A.salu("s_add_u32", s(37), s(35), 81920)
        A.buf_load_lds(AOFF, SA, s(36))
        A.salu("s_add_u32", 'm0', s(33), 65536 + stage*16384)
        A.salu("s_add_u32", s(34), s(34), 256)
        A.buf_load_lds(BOFF, SB_, s(35))
        A.salu("s_add_u32", 'm0', s(33), 65536 + stage*16384 + 8192)
        A.salu("s_add_u32", s(35), s(35), 163840)
        A.buf_load_lds(BOFF, SB_, s(37))
    def compute(stage):
        FB = 48
        for i in range(4):
            A.ds_read("ds_read_b128", v(FB + i*8, 4), OA[i], stage*16384)
            A.ds_read("ds_read_b64_tr_b16", v(FB + i*8 + 4, 2), WA, stage*16384 + i*2048)
            A.ds_read("ds_read_b64_tr_b16", v(FB + i*8 + 6, 2), WA, stage*16384 + i*2048 + 512)
        for i in range(4):
            A.wait(lgkm=3*(3-i))
            A.mfma(32, ACC, v(FB + i*8 + 4, 4), v(FB + i*8, 4), ACC)
    for st in range(3): issue(st)
    A.salu("s_mov_b32", s(38), 7)
    A.label("L_op_loop")
    for st in range(4):
        A.wait(vm=8); A.barrier()
        issue((st+3) % 4)
        compute(st)
    A.salu("s_sub_u32", s(38), s(38), 1)
    A.raw("s_cmp_lg_u32 s38, 0")
    A.raw("s_cbranch_scc1 L_op_loop")
    A.wait(vm=8); A.barrier(); issue(3); compute(0)
    A.wait(vm=8); A.barrier(); compute(1)
    A.wait(vm=4); A.barrier(); compute(2)
    A.wait(vm=0); A.barrier(); compute(3)
    A.barrier()
    RA = v(17)
    A.valu("v_and_b32", v(5), 3, WV)
    A.valu("v_lshlrev_b32", RA, 12, v(5))
    A.valu("v_lshl_add_u32", RA, LANE, 4, RA)
    A.fence(12)
    A.raw("s_cmp_lt_u32 s19, 4")
    A.raw("s_cbranch_scc1 L_op_rd")
    for q in range(4): A.ds_write("ds_write_b128", RA, v(32+4*q, 4), q*1024)
    A.wait(lgkm=0)
    A.label("L_op_rd")
    A.barrier()
    A.raw("s_cmp_ge_u32 s19, 4")
    A.raw("s_cbranch_scc1 L_op_end")
    for q in range(4): A.ds_read("ds_read_b128", v(48+4*q, 4), RA, q*1024)
    A.valu("v_and_b32", v(5), 31, LANE)
    A.valu("v_lshl_add_u32", v(5), MH, 5, v(5))
    A.valu("v_mul_lo_u32", v(5), v(5), s(32))
    A.valu("v_lshl_add_u32", v(5), NH, 6, v(5))
    A.valu("v_lshrrev_b32", v(6), 5, LANE)
    A.valu("v_lshl_add_u32", v(5), v(6), 3, v(5))
    A.wait(lgkm=0)
    for q in range(4):
        for e in range(4): A.valu("v_add_f32", v(32+4*q+e), v(32+4*q+e), v(48+4*q+e))
        A.valu("v_cvt_pk_bf16_f32", v(64+2*q), v(32+4*q), v(32+4*q+1))
        A.valu("v_cvt_pk_bf16_f32", v(64+2*q+1), v(32+4*q+2), v(32+4*q+3))
        A.buf_store("buffer_store_dwordx2", v(64+2*q, 2), v(5), SO, 0, offset=16*q)
    A.label("L_op_end")
    A.raw("s_endpgm")
    return A, name

def main(out):
    k1, n1 = kernel1()
    k2, n2 = kernel2()
    hdr = open("standalone__mha_block_cached__near_ridge.s.ref").read().split("; Override launch")[0]
    txt = hdr
    txt += f"; @launch kernel={n1} grid=(256,1,1) block=(256,1,1) lds=163840\n"
    txt += f"; @launch kernel={n2} grid=(240,1,1) block=(512,1,1) lds=131072\n"
    txt += '.amdgcn_target "amdgcn-amd-amdhsa--gfx950"\n.text\n'
    txt += k1.text() + k2.text()
    txt += '.section .rodata,"a"\n' + kd(n1, 512, 256) + kd(n2, 128, 128)
    open(out, "w").write(txt)
    print("k1 lines", len(k1.lines), "nops", k1.nops, "k2 lines", len(k2.lines), "nops", k2.nops)
main(sys.argv[1])
```

```python
import sys, struct, os
from asmlib import *

def f32bits(x): return struct.unpack("<I", struct.pack("<f", x))[0]
CSCALE = (128 ** -0.5) * 1.4426950408889634
STAMPW = int(os.environ.get("STAMPW", "-1"))
STAMP = STAMPW >= 0

def stamp(A, st):
    if not STAMP: return
    k = st[0]; st[0] += 1
    A.raw(f"s_memtime s[{60+2*k}:{61+2*k}]")
    A.raw("s_waitcnt lgkmcnt(0)")
def stamp_out(A, st, wg, tag):
    if not STAMP: return
    A.raw(f"s_cmp_lg_u32 s2, {wg}")
    A.raw(f"s_cbranch_scc1 L_st_skip{tag}")
    A.raw("s_load_dwordx2 s[56:57], s[0:1], 48")
    A.raw("s_waitcnt lgkmcnt(0)")
    A.raw("s_mov_b32 s58, 256"); A.raw("s_mov_b32 s59, 0x20000")
    A.raw(f"s_cmp_lg_u32 s19, {STAMPW}")
    A.raw(f"s_cbranch_scc1 L_st_skip{tag}")
    A.raw("v_mov_b32 v1, 0")
    for k in range(1, st[0]):
        A.raw(f"s_sub_u32 s{60+2*k}, s{60+2*k}, s60")
        A.raw(f"v_mov_b32 v2, s{60+2*k}")
        A.raw(f"buffer_store_dword v2, v1, s[56:59], 0 offen offset:{4*k}")
    A.raw("s_waitcnt vmcnt(0)")
    A.label(f"L_st_skip{tag}")

def merge(A, M, V, lead=0):
    nm = sum(1 for x in M if x[0])
    vi = 0; seen = 0
    for _ in range(min(lead, len(V))):
        V[vi](); vi += 1
    v0 = vi
    rem0 = len(V) - vi
    for ism, fn in M:
        fn()
        if ism:
            seen += 1
            tgt = v0 + (rem0 * seen + nm - 1) // nm
            while vi < min(tgt, len(V)):
                V[vi](); vi += 1
    while vi < len(V):
        V[vi](); vi += 1

def kernel1():
    A = Asm()
    st = [0]
    name = "attn_kernel"
    A.lines.append(f".p2align 8\n{name}:")
    A.raw("s_cmp_ge_u32 s2, 256")
    A.raw("s_cbranch_scc1 L_attn_end")
    A.raw("s_load_dwordx4 s[4:7], s[0:1], 0")
    A.raw("s_load_dwordx4 s[8:11], s[0:1], 16")
    A.raw("s_load_dwordx2 s[12:13], s[0:1], 56")
    A.salu("s_and_b32", s(14), s(2), 7)
    A.salu("s_lshr_b32", s(15), s(2), 3)
    A.salu("s_and_b32", s(16), s(14), 1)
    A.salu("s_lshl_b32", s(16), s(16), 2)
    A.salu("s_and_b32", s(17), s(15), 3)
    A.salu("s_add_u32", s(16), s(16), s(17))
    A.salu("s_lshr_b32", s(17), s(14), 1)
    A.salu("s_lshl_b32", s(17), s(17), 3)
    A.salu("s_lshr_b32", s(18), s(15), 2)
    A.salu("s_add_u32", s(17), s(17), s(18))
    LANE, WV = v(1), v(2)
    A.valu("v_and_b32", LANE, 63, v(0))
    A.valu("v_lshrrev_b32", WV, 6, v(0))
    A.valu("v_readfirstlane_b32", s(19), WV)
    L15, G, RR, C3, HI, L31, P_, QH = v(3), v(4), v(5), v(6), v(7), v(8), v(9), v(10)
    A.valu("v_and_b32", L15, 15, LANE)
    A.valu("v_lshrrev_b32", G, 4, LANE)
    A.valu("v_bfe_u32", RR, LANE, 2, 2)
    A.valu("v_and_b32", C3, 3, LANE)
    A.valu("v_lshrrev_b32", HI, 5, LANE)
    A.valu("v_and_b32", L31, 31, LANE)
    A.valu("v_and_b32", P_, 1, WV)
    A.valu("v_lshrrev_b32", QH, 1, WV)
    t1, t2, t3 = v(11), v(12), v(13)
    XOFF = v(208)
    A.valu("v_lshrrev_b32", t1, 3, LANE)
    A.valu("v_lshrrev_b32", t2, 1, t1)
    A.valu("v_lshl_add_u32", t2, P_, 2, t2)
    A.valu("v_and_b32", t3, 7, LANE)
    A.valu("v_xor_b32", t2, t2, t3)
    A.valu("v_lshl_add_u32", t1, P_, 3, t1)
    A.valu("v_mul_u32_u24", t1, 1280, t1)
    A.valu("v_lshl_add_u32", XOFF, t2, 4, t1)
    WQOFF = v(209)
    A.valu("v_lshlrev_b32", t1, 2, G)
    A.valu("v_xor_b32", t1, t1, L15)
    A.valu("v_lshlrev_b32", t1, 4, t1)
    A.valu("v_lshl_add_u32", t2, P_, 2, G)
    A.valu("v_lshl_add_u32", WQOFF, t2, 13, t1)
    KVI = [v(210), v(211)]
    KVR = v(212)
    A.valu("v_lshlrev_b32", t1, 2, G)
    A.valu("v_xor_b32", t1, t1, L15)
    A.valu("v_xor_b32", t2, t1, P_)
    A.valu("v_lshlrev_b32", t2, 4, t2)
    A.valu("v_lshl_add_u32", KVI[0], G, 8, t2)
    A.valu("v_xor_b32", KVI[1], 32, KVI[0])
    A.valu("v_xor_b32", t2, t1, WV)
    A.valu("v_lshlrev_b32", t2, 4, t2)
    A.valu("v_lshl_add_u32", KVR, G, 8, t2)
    A.wait(lgkm=0)
    stamp(A, st)
    SX, SWQ, SK, SV, SO = s(20,4), s(24,4), s(28,4), s(32,4), s(36,4)
    A.salu("s_mul_i32", s(40), s(16), 245760)
    A.salu("s_add_u32", s(20), s(4), s(40)); A.salu("s_addc_u32", s(21), s(5), 0)
    A.salu("s_mov_b32", s(22), 245760); A.salu("s_mov_b32", s(23), 0x20000)
    A.salu("s_lshl_b32", s(40), s(17), 8)
    A.salu("s_add_u32", s(24), s(10), s(40)); A.salu("s_addc_u32", s(25), s(11), 0)
    A.salu("s_sub_u32", s(26), 5242880, s(40)); A.salu("s_mov_b32", s(27), 0x20000)
    A.salu("s_lshl_b32", s(41), s(16), 5); A.salu("s_add_u32", s(41), s(41), s(17)); A.salu("s_lshl_b32", s(41), s(41), 17)
    A.salu("s_add_u32", s(28), s(6), s(41)); A.salu("s_addc_u32", s(29), s(7), 0)
    A.salu("s_mov_b32", s(30), 131072); A.salu("s_mov_b32", s(31), 0x20000)
    A.salu("s_add_u32", s(32), s(8), s(41)); A.salu("s_addc_u32", s(33), s(9), 0)
    A.salu("s_mov_b32", s(34), 131072); A.salu("s_mov_b32", s(35), 0x20000)
    A.salu("s_mul_i32", s(41), s(17), 1536); A.salu("s_mul_i32", s(40), s(16), 192); A.salu("s_add_u32", s(41), s(41), s(40)); A.salu("s_lshl_b32", s(41), s(41), 8)
    A.salu("s_add_u32", s(36), s(12), s(41)); A.salu("s_addc_u32", s(37), s(13), 0)
    A.salu("s_mov_b32", s(38), 49152); A.salu("s_mov_b32", s(39), 0x20000)
    A.salu("s_mov_b32", s(42), f32bits(CSCALE))
    SC = s(42)
    A.salu("s_and_b32", s(46), s(19), 1); A.salu("s_lshl_b32", s(46), s(46), 10)
    A.salu("s_lshl_b32", s(48), s(19), 10)
    STG = 81920
    def stage(c): return STG + (c & 1)*40960
    tiles = [('K',0),('K',1)]
    for j in range(6): tiles += [('V',j),('K',j+2)]
    tiles += [('V',6),('V',7)]
    slotmap = [0,1,2,3,4, 8,9, 5,6,7, 0,1,2,3,4, 8]
    slot = lambda i: slotmap[i]
    def issue_kv_init(i):
        kind, j = tiles[i]
        srd = SK if kind == 'K' else SV
        for n in range(4):
            A.salu("s_add_u32", 'm0', s(46), slot(i)*16384 + n*4096)
            A.salu("s_add_u32", s(47), s(46), j*16384 + n*4096)
            A.buf_load_lds(KVI[0], srd, s(47))
            A.buf_load_lds(KVI[1], srd, s(47), offset=2048)
    def issue_refill(i):
        kind, j = tiles[i]
        srd = SK if kind == 'K' else SV
        for n in range(4):
            A.salu("s_add_u32", 'm0', s(48), slot(i)*16384 + n*4096)
            A.salu("s_add_u32", s(47), s(48), j*16384 + n*4096)
            A.buf_load_lds(KVR, srd, s(47))
    def issue_xw(c):
        for n in range(12):
            A.salu("s_add_u32", 'm0', s(46), stage(c) + n*2048)
            A.salu("s_mov_b32", s(47), n*16*1280 + c*128)
            A.buf_load_lds(XOFF, SX, s(47))
        for n in range(8):
            A.salu("s_add_u32", 'm0', s(46), stage(c) + 24576 + n*2048)
            A.salu("s_mov_b32", s(47), (64*c + 8*n)*8192)
            A.buf_load_lds(WQOFF, SWQ, s(47))
    A.raw("s_cmp_ge_u32 s19, 2")
    A.raw("s_cbranch_scc1 L_attn_kvinit")
    issue_xw(0); issue_xw(1)
    A.raw("s_branch L_attn_initdone")
    A.label("L_attn_kvinit")
    for i in range(5): issue_kv_init(i)
    A.label("L_attn_initdone")
    stamp(A, st)
    XA = [v(213+i) for i in range(4)]
    A.valu("v_mul_u32_u24", t1, 96, QH)
    A.valu("v_add_u32", t1, t1, L31)
    A.valu("v_bfe_u32", t2, t1, 1, 3)
    A.valu("v_xor_b32", t2, t2, HI)
    A.valu("v_lshlrev_b32", t2, 4, t2)
    A.valu("v_lshl_add_u32", t2, t1, 7, t2)
    A.valu("v_add_u32", XA[0], STG, t2)
    for ks in range(1, 4): A.valu("v_xor_b32", XA[ks], 32*ks, XA[0])
    WA = [v(217), v(218)]
    A.valu("v_lshl_add_u32", t1, HI, 3, RR)
    A.valu("v_lshlrev_b32", t1, 8, t1)
    A.valu("v_and_b32", t2, 1, G)
    A.valu("v_and_b32", t3, 1, C3)
    A.valu("v_lshl_add_u32", t2, t2, 1, t3)
    A.valu("v_lshl_add_u32", t2, P_, 3, t2)
    A.valu("v_lshlrev_b32", t3, 2, RR)
    A.valu("v_xor_b32", t2, t2, t3)
    A.valu("v_lshl_add_u32", t1, t2, 4, t1)
    A.valu("v_lshrrev_b32", t3, 1, C3)
    A.valu("v_lshl_add_u32", t1, t3, 3, t1)
    A.valu("v_add_u32", WA[0], STG + 24576, t1)
    A.valu("v_xor_b32", WA[1], 64, WA[0])
    KB = v(219)
    A.valu("v_lshlrev_b32", t1, 2, C3)
    A.valu("v_or_b32", t1, t1, RR)
    A.valu("v_xor_b32", t1, t1, HI)
    A.valu("v_lshlrev_b32", t1, 4, t1)
    A.valu("v_lshl_add_u32", t2, P_, 5, L31)
    A.valu("v_lshl_add_u32", KB, t2, 8, t1)
    VB = v(220)
    A.valu("v_lshl_add_u32", t1, HI, 2, RR)
    A.valu("v_lshl_add_u32", t1, P_, 5, t1)
    A.valu("v_lshlrev_b32", t1, 8, t1)
    A.valu("v_and_b32", t2, 1, G)
    A.valu("v_lshrrev_b32", t3, 1, C3)
    A.valu("v_lshl_add_u32", t2, t2, 1, t3)
    A.valu("v_xor_b32", t2, t2, HI)
    A.valu("v_lshl_add_u32", t2, RR, 2, t2)
    A.valu("v_lshl_add_u32", t1, t2, 4, t1)
    A.valu("v_and_b32", t3, 1, C3)
    A.valu("v_lshl_add_u32", VB, t3, 3, t1)

    SB = 16
    QF = 112
    def qacc(i, T): return v(SB + (i*2 + T)*16, 16)
    def xfr(c, i, ks): return a((c&1)*80 + (ks*3 + i)*4, 4)
    def wfr(c, T, ks): return a((c&1)*80 + 48 + (ks*2 + T)*4, 4)
    def reads(c):
        R = []
        so = (c & 1)*40960
        for ks in range(4):
            for T in range(2):
                f = wfr(c, T, ks)
                R.append(lambda f=f, T=T, ks=ks: A.ds_read("ds_read_b64_tr_b16", a(f[1], 2), WA[T], so + ks*4096))
                R.append(lambda f=f, T=T, ks=ks: A.ds_read("ds_read_b64_tr_b16", a(f[1]+2, 2), WA[T], so + ks*4096 + 1024))
            for i in range(3):
                R.append(lambda i=i, ks=ks: A.ds_read("ds_read_b128", xfr(c, i, ks), XA[ks], so + i*4096))
        return R
    def wait_landed(c, tag):
        A.raw("s_cmp_ge_u32 s19, 2")
        A.raw(f"s_cbranch_scc1 L_attn_wl{tag}")
        A.wait(vm=20 if c < 9 else 0)
        A.label(f"L_attn_wl{tag}")
        A.barrier()
    def free_and_issue(c, tag):
        A.wait(lgkm=0)
        A.barrier()
        if c + 2 <= 9:
            A.raw("s_cmp_ge_u32 s19, 2")
            A.raw(f"s_cbranch_scc1 L_attn_fi{tag}")
            issue_xw(c+2)
            A.label(f"L_attn_fi{tag}")
    issued = [8]*5
    wait_landed(0, "p")
    stamp(A, st)
    for r in reads(0): r()
    free_and_issue(0, "p")
    for c in range(10):
        MM = []
        for ks in range(4):
            for T in range(2):
                for i in range(3):
                    d = qacc(i, T)
                    MM.append((True, lambda d=d, T=T, i=i, ks=ks: A.mfma(32, d, wfr(c, T, ks), xfr(c, i, ks), d if (c > 0 or ks > 0) else 0)))
        if c < 9:
            wait_landed(c+1, c)
            if c in (0, 4): stamp(A, st)
            merge(A, MM[:8], reads(c+1))
            free_and_issue(c+1, c)
            if c == 8:
                issue_refill(5); issued.append(4)
                issue_refill(6); issued.append(4)
            merge(A, MM[8:], [])
        else:
            merge(A, MM, [])
    stamp(A, st)
    EX = STG
    EXW, EXR = v(221), v(222)
    A.valu("v_lshlrev_b32", t1, 4, LANE)
    A.valu("v_mul_u32_u24", t2, 12288, WV)
    A.valu("v_add3_u32", EXW, t1, t2, v(14)) if False else None
    A.valu("v_add_u32", EXW, t1, t2)
    A.valu("v_add_u32", EXW, EX, EXW)
    A.valu("v_mul_u32_u24", t2, 24576, QH)
    A.valu("v_add_u32", EXR, t1, t2)
    A.valu("v_add_u32", EXR, EX, EXR)
    for i in range(3):
        for T in range(2):
            q = qacc(i, T)[1]
            for k in range(8):
                A.valu("v_cvt_pk_bf16_f32", v(q + k), v(q + 2*k), v(q + 2*k + 1))
            for hh in range(2):
                A.ds_write("ds_write_b128", EXW, v(q + 4*hh, 4), (i*4 + T*2 + hh)*1024)
    A.wait(lgkm=0)
    A.barrier()
    for i in range(3):
        for ks in range(8):
            A.ds_read("ds_read_b128", v(QF + (i*8+ks)*4, 4), EXR, (ks>>2)*12288 + (i*4 + (ks&3))*1024)
    A.wait(lgkm=0)
    def Sreg(buf, i): return v(SB + buf*48 + i*16, 16)
    def Preg(buf, i, ks): return v(SB + buf*48 + i*16 + ks*4, 4)
    def Oreg(i, u): return a((i*4+u)*16, 16)
    FB = 192; NFB = 16
    KA = [v(223+i) for i in range(8)]
    VA = KA
    MC = [v(231+i) for i in range(3)]
    AL = [v(234+i) for i in range(3)]
    LS = [v(237+i) for i in range(3)]
    T = [v(240+i) for i in range(12)]
    FLAG = s(52, 2)
    def pre_step(cidx, M):
        def fn():
            if cidx in (0,): stamp(A, st)
            after = sum(issued[cidx+1:])
            A.wait(vm=min(63, after))
            A.barrier()
            if cidx in (0,1,2,3,4,8,12,14,15): stamp(A, st)
            if cidx == 0:
                for i in (7, 8, 9):
                    issue_refill(i); issued.append(4)
            elif cidx - 1 + 10 <= 15:
                issue_refill(cidx - 1 + 10); issued.append(4)
        M.append((False, fn))
    fcount = [0]
    def qk_stream(cidx, j):
        M = []
        buf = j & 1
        sl = slot(cidx)*16384
        def addr():
            A.valu("v_add_u32", KA[0], sl, KB)
            for ks in range(1, 8): A.valu("v_xor_b32", KA[ks], 32*ks, KA[0])
        M.append((False, addr))
        pre_step(cidx, M)
        PD = 3
        base = fcount[0]
        def rd(n): A.ds_read("ds_read_b128", a(FB + ((base+n) % NFB)*4, 4), KA[n])
        for n in range(PD): M.append((False, lambda n=n: rd(n)))
        for n in range(8):
            if n + PD < 8: M.append((False, lambda n=n: rd(n+PD)))
            outstanding = min(8, n + PD + 1) - (n + 1)
            M.append((False, lambda o=outstanding: A.wait(lgkm=o)))
            for i in range(3):
                d = Sreg(buf, i)
                M.append((True, lambda d=d, n=n, i=i: A.mfma(32, d, a(FB + ((base+n) % NFB)*4, 4), v(QF + (i*8+n)*4, 4), d if n > 0 else 0)))
        fcount[0] += 8
        return M
    def pv_stream(cidx, j):
        M = []
        buf = j & 1
        sl = slot(cidx)*16384
        def addr():
            A.valu("v_add_u32", VA[0], sl, VB)
            for k in range(1, 8): A.valu("v_xor_b32", VA[k], 32*k, VA[0])
        M.append((False, addr))
        pre_step(cidx, M)
        fl = [(ks, u) for ks in range(2) for u in range(4)]
        PD = 3
        base = fcount[0]
        def rd(n):
            ks, u = fl[n]
            fr = FB + ((base+n) % NFB)*4
            A.ds_read("ds_read_b64_tr_b16", a(fr, 2), VA[2*u], ks*4096)
            A.ds_read("ds_read_b64_tr_b16", a(fr+2, 2), VA[2*u+1], ks*4096 + 2048)
        for n in range(PD): M.append((False, lambda n=n: rd(n)))
        for n in range(8):
            if n + PD < 8: M.append((False, lambda n=n: rd(n+PD)))
            outstanding = min(8, n + PD + 1) - (n + 1)
            M.append((False, lambda o=outstanding: A.wait(lgkm=2*o)))
            ks, u = fl[n]
            for i in range(3):
                d = Oreg(i, u)
                M.append((True, lambda d=d, n=n, i=i, ks=ks: A.mfma(32, d, a(FB + ((base+n) % NFB)*4, 4), Preg(buf, i, ks), d if (j > 0 or ks > 0) else 0)))
        fcount[0] += 8
        return M
    def sm_stream(j):
        buf = j & 1
        V = []
        def op(*args, **kw): V.append(lambda: A.valu(*args, **kw))
        if j > 0: V.append(lambda: A.salu("s_mov_b64", FLAG, 0))
        for i in range(3):
            b0 = SB + buf*48 + i*16
            t0 = T[i*4]
            op("v_max3_f32", t0, v(b0), v(b0+1), v(b0+2))
            for n in range(6): op("v_max3_f32", t0, t0, v(b0+3+2*n), v(b0+4+2*n))
            op("v_max_f32", t0, t0, v(b0+15))
            op("v_mov_b32", T[i*4+1], t0)
        for i in range(3):
            op("v_permlane32_swap_b32", T[i*4], T[i*4+1])
        for i in range(3):
            t0, ta, tb = T[i*4], T[i*4+1], T[i*4+2]
            op("v_max_f32", t0, t0, ta)
            if j == 0:
                op("v_mul_f32", MC[i], SC, t0)
            else:
                op("v_mul_f32", t0, SC, t0)
                op("v_sub_f32", ta, t0, MC[i])
                op("v_cmp_lt_f32", 'vcc', 0x41000000, ta)
                V.append(lambda: A.salu("s_or_b64", FLAG, FLAG, 'vcc'))
                op("v_cndmask_b32", tb, MC[i], t0, 'vcc')
                op("v_sub_f32", ta, MC[i], tb)
                op("v_exp_f32", AL[i], ta)
                op("v_mov_b32", MC[i], tb)
                op("v_mul_f32", LS[i], LS[i], AL[i])
        for i in range(3):
            b0 = SB + buf*48 + i*16
            for n in range(18):
                if n < 16: op("v_fma_f32", v(b0+n), v(b0+n), SC, ('neg', MC[i]))
                if 1 <= n <= 16: op("v_exp_f32", v(b0+n-1), v(b0+n-1))
                if 2 <= n <= 17:
                    if j == 0 and n == 2: op("v_mov_b32", LS[i], v(b0))
                    else: op("v_add_f32", LS[i], LS[i], v(b0+n-2))
                if n >= 3 and n % 2 == 1:
                    k = (n-3)//2
                    op("v_cvt_pk_bf16_f32", v(b0+k), v(b0+2*k), v(b0+2*k+1))
        return V
    def rescale(j):
        A.raw("s_cmp_eq_u64 s[52:53], 0")
        A.raw(f"s_cbranch_scc1 L_attn_nors{j}")
        A.fence(14)
        for i in range(3):
            for u in range(4):
                r = Oreg(i, u)
                for e0 in range(0, 16, 4):
                    for e in range(4): A.valu("v_accvgpr_read_b32", T[e], a(r[1]+e0+e))
                    for e in range(4): A.valu("v_mul_f32", T[e], T[e], AL[i])
                    for e in range(4): A.valu("v_accvgpr_write_b32", a(r[1]+e0+e), T[e])
        A.fence(4)
        A.label(f"L_attn_nors{j}")
        A.fence(2)
    merge(A, qk_stream(0, 0), [])
    merge(A, qk_stream(1, 1), sm_stream(0))
    cidx = 2
    for j in range(7):
        V = sm_stream(j+1)
        if j >= 1: rescale(j)
        if j < 6:
            h = len(V)//2
            merge(A, pv_stream(cidx, j), V[:h]); cidx += 1
            merge(A, qk_stream(cidx, j+2), V[h:]); cidx += 1
        else:
            merge(A, pv_stream(cidx, j), V); cidx += 1
    rescale(7)
    merge(A, pv_stream(cidx, 7), []); cidx += 1
    assert cidx == 16
    stamp(A, st)
    CW, CR, MLW, MLR = v(223), v(224), v(225), v(226)
    A.valu("v_lshlrev_b32", t1, 4, LANE)
    A.valu("v_mul_u32_u24", t2, 24576, WV)
    A.valu("v_add_u32", CW, t1, t2)
    A.valu("v_xor_b32", t3, 1, WV)
    A.valu("v_mul_u32_u24", t2, 24576, t3)
    A.valu("v_add_u32", CR, t1, t2)
    A.valu("v_lshlrev_b32", t1, 2, LANE)
    A.valu("v_lshl_add_u32", MLW, WV, 11, t1)
    A.valu("v_add_u32", MLW, 98304, MLW)
    A.valu("v_lshl_add_u32", MLR, t3, 11, t1)
    A.valu("v_add_u32", MLR, 98304, MLR)
    for i in range(3):
        A.valu("v_mov_b32", T[i], LS[i])
    for i in range(3):
        A.valu("v_permlane32_swap_b32", LS[i], T[i])
    for i in range(3):
        A.valu("v_add_f32", LS[i], LS[i], T[i])
    for i in range(3):
        A.ds_write("ds_write_b32", MLW, MC[i], i*256)
        A.ds_write("ds_write_b32", MLW, LS[i], 768 + i*256)
    A.raw("s_bitcmp1_b32 s19, 0")
    A.raw("s_cbranch_scc1 L_attn_send1")
    for pp in range(2):
        if pp == 1: A.label("L_attn_send1")
        A.fence(2)
        for i in range(3):
            for uu in range(2):
                r = Oreg(i, 2*(1-pp) + uu)
                for q in range(4):
                    A.ds_write("ds_write_b128", CW, a(r[1] + 4*q, 4), ((i*2+uu)*4 + q)*1024)
        for i in range(3):
            for uu in range(2):
                r = Oreg(i, 2*pp + uu)
                for e in range(16): A.valu("v_accvgpr_read_b32", v(16 + (i*2+uu)*16 + e), a(r[1] + e))
        if pp == 0: A.raw("s_branch L_attn_sent")
    A.label("L_attn_sent")
    A.wait(lgkm=0)
    A.barrier()
    for i in range(3):
        A.ds_read("ds_read_b32", T[i], MLR, i*256)
        A.ds_read("ds_read_b32", T[3+i], MLR, 768 + i*256)
    for n in range(24):
        A.ds_read("ds_read_b128", v(112 + n*4, 4), CR, n*1024)
    A.wait(lgkm=15)
    FA = [v(227+i) for i in range(3)]; FBq = AL
    for i in range(3):
        A.valu("v_max_f32", T[6], MC[i], T[i])
        A.valu("v_sub_f32", T[7], MC[i], T[6])
        A.valu("v_sub_f32", T[8], T[i], T[6])
        A.valu("v_exp_f32", T[7], T[7])
        A.valu("v_exp_f32", T[8], T[8])
        A.valu("v_mul_f32", T[9], LS[i], T[7])
        A.valu("v_fma_f32", T[9], T[3+i], T[8], T[9])
        A.valu("v_rcp_f32", T[9], T[9])
        A.valu("v_mul_f32", FA[i], T[7], T[9])
        A.valu("v_mul_f32", FBq[i], T[8], T[9])
    TW, TR = v(223), v(225)
    A.valu("v_mul_u32_u24", t2, 24576, t3)
    A.valu("v_mul_u32_u24", t1, 144, L31)
    A.valu("v_lshl_add_u32", t1, HI, 3, t1)
    A.valu("v_add_u32", TW, t1, t2)
    A.valu("v_lshrrev_b32", t1, 3, LANE)
    A.valu("v_mul_u32_u24", t1, 144, t1)
    A.valu("v_and_b32", v(14), 7, LANE)
    A.valu("v_lshl_add_u32", t1, v(14), 4, t1)
    A.valu("v_add_u32", TR, t1, t2)
    OOFF = v(226)
    A.valu("v_lshrrev_b32", t1, 3, LANE)
    A.valu("v_mul_u32_u24", t2, 96, QH)
    A.valu("v_add_u32", t1, t1, t2)
    A.valu("v_lshlrev_b32", t1, 8, t1)
    A.valu("v_lshl_add_u32", t1, P_, 7, t1)
    A.valu("v_lshl_add_u32", OOFF, v(14), 4, t1)
    A.wait(lgkm=0)
    for i in range(3):
        for uu in range(2):
            o = 16 + (i*2+uu)*16; r = 112 + (i*2+uu)*16
            for e in range(16): A.valu("v_mul_f32", v(o+e), v(o+e), FA[i])
            for e in range(16): A.valu("v_fma_f32", v(o+e), v(r+e), FBq[i], v(o+e))
            for k in range(8): A.valu("v_cvt_pk_bf16_f32", v(o+k), v(o+2*k), v(o+2*k+1))
            for q in range(4):
                A.ds_write("ds_write_b64", TW, v(o+2*q, 2), i*32*144 + uu*64 + q*16)
    A.wait(lgkm=0)
    for n in range(12):
        A.ds_read("ds_read_b128", v(112 + n*4, 4), TR, n*8*144)
    for n in range(12):
        A.wait(lgkm=11-n)
        A.buf_store("buffer_store_dwordx4", v(112 + n*4, 4), OOFF, SO, 0, offset=n*2048) if n < 2 else None
        if n >= 2:
            A.salu("s_mov_b32", s(47), n*2048)
            A.buf_store("buffer_store_dwordx4", v(112 + n*4, 4), OOFF, SO, s(47))
    if STAMP:
        A.wait(vm=0)
        stamp(A, st)
        stamp_out(A, st, 37, "a")
    A.label("L_attn_end")
    A.raw("s_endpgm")
    return A, name

def kernel2():
    A = Asm()
    st = [0]
    name = "oproj_kernel"
    A.lines.append(f".p2align 8\n{name}:")
    A.raw("s_cmp_ge_u32 s2, 240")
    A.raw("s_cbranch_scc1 L_op_end")
    A.raw("s_load_dwordx4 s[4:7], s[0:1], 32")
    A.raw("s_load_dwordx2 s[8:9], s[0:1], 56")
    A.salu("s_and_b32", s(10), s(2), 7)
    A.salu("s_lshr_b32", s(11), s(2), 3)
    A.salu("s_mul_i32", s(12), s(11), 43); A.salu("s_lshr_b32", s(12), s(12), 8)
    A.salu("s_mul_i32", s(13), s(12), 6); A.salu("s_sub_u32", s(13), s(11), s(13))
    A.salu("s_lshr_b32", s(14), s(10), 1); A.salu("s_mul_i32", s(14), s(14), 6); A.salu("s_add_u32", s(14), s(14), s(13))
    A.salu("s_and_b32", s(15), s(10), 1); A.salu("s_mul_i32", s(15), s(15), 5); A.salu("s_add_u32", s(15), s(15), s(12))
    LANE, WV = v(1), v(2)
    A.valu("v_and_b32", LANE, 63, v(0))
    A.valu("v_lshrrev_b32", WV, 6, v(0))
    A.valu("v_readfirstlane_b32", s(19), WV)
    A.wait(lgkm=0)
    stamp(A, st)
    SA, SB_, SO = s(20,4), s(24,4), s(28,4)
    A.salu("s_lshl_b32", s(16), s(14), 14)
    A.salu("s_add_u32", s(20), s(8), s(16)); A.salu("s_addc_u32", s(21), s(9), 0)
    A.salu("s_sub_u32", s(22), 32*1536*256, s(16)); A.salu("s_mov_b32", s(23), 0x20000)
    A.salu("s_lshl_b32", s(16), s(15), 7)
    A.salu("s_add_u32", s(24), s(4), s(16)); A.salu("s_addc_u32", s(25), s(5), 0)
    A.salu("s_sub_u32", s(26), 5242880, s(16)); A.salu("s_mov_b32", s(27), 0x20000)
    A.salu("s_mul_i32", s(17), s(14), 64*1280); A.salu("s_add_u32", s(17), s(17), s(16))
    A.salu("s_add_u32", s(28), s(6), s(17)); A.salu("s_addc_u32", s(29), s(7), 0)
    A.salu("s_sub_u32", s(30), 64*1280, s(16)); A.salu("s_mov_b32", s(31), 0x20000)
    AOFF, BOFF = v(3), v(4)
    A.valu("v_lshrrev_b32", v(5), 4, LANE)
    A.valu("v_and_b32", v(6), 15, LANE)
    A.valu("v_lshl_add_u32", v(7), WV, 2, v(5))
    A.valu("v_and_b32", v(8), 15, v(7))
    A.valu("v_xor_b32", v(8), v(8), v(6))
    A.valu("v_lshlrev_b32", v(8), 4, v(8))
    A.valu("v_lshl_add_u32", AOFF, v(7), 8, v(8))
    A.valu("v_lshrrev_b32", v(5), 3, LANE)
    A.valu("v_and_b32", v(6), 7, LANE)
    A.valu("v_lshl_add_u32", v(7), WV, 3, v(5))
    A.salu("s_mov_b32", s(32), 1280)
    A.valu("v_mul_lo_u32", BOFF, v(7), s(32))
    A.valu("v_bfe_u32", v(8), v(5), 1, 1)
    A.valu("v_lshlrev_b32", v(8), 2, v(8))
    A.valu("v_xor_b32", v(8), v(8), v(6))
    A.valu("v_lshl_add_u32", BOFF, v(8), 4, BOFF)
    A.salu("s_lshl_b32", s(33), s(19), 10)
    A.salu("s_mov_b32", s(34), 0)
    A.salu("s_mov_b32", s(35), 0)
    def issue(stage):
        A.salu("s_add_u32", 'm0', s(33), stage*16384)
        A.salu("s_add_u32", s(36), s(34), 8192)
        A.buf_load_lds(AOFF, SA, s(34))
        A.salu("s_add_u32", 'm0', s(33), stage*16384 + 8192)
        A.salu("s_add_u32", s(37), s(35), 81920)
        A.buf_load_lds(AOFF, SA, s(36))
        A.salu("s_add_u32", 'm0', s(33), 65536 + stage*16384)
        A.salu("s_add_u32", s(34), s(34), 393216)
        A.buf_load_lds(BOFF, SB_, s(35))
        A.salu("s_add_u32", 'm0', s(33), 65536 + stage*16384 + 8192)
        A.salu("s_add_u32", s(35), s(35), 163840)
        A.buf_load_lds(BOFF, SB_, s(37))
    for stg in range(3): issue(stg)
    MH, NH, KH = v(9), v(10), v(11)
    A.valu("v_and_b32", MH, 1, WV)
    A.valu("v_bfe_u32", NH, WV, 1, 1)
    A.valu("v_lshrrev_b32", KH, 2, WV)
    OA = [v(12+i) for i in range(4)]
    A.valu("v_and_b32", v(5), 31, LANE)
    A.valu("v_lshl_add_u32", v(5), MH, 5, v(5))
    A.valu("v_lshrrev_b32", v(6), 5, LANE)
    A.valu("v_and_b32", v(7), 15, LANE)
    A.valu("v_xor_b32", v(6), v(6), v(7))
    A.valu("v_lshlrev_b32", v(7), 3, KH)
    A.valu("v_xor_b32", v(6), v(6), v(7))
    A.valu("v_lshlrev_b32", v(6), 4, v(6))
    A.valu("v_lshl_add_u32", OA[0], v(5), 8, v(6))
    for i in range(1, 4): A.valu("v_xor_b32", OA[i], 32*i, OA[0])
    WA = v(16)
    A.valu("v_lshrrev_b32", v(5), 5, LANE)
    A.valu("v_bfe_u32", v(6), LANE, 2, 2)
    A.valu("v_lshl_add_u32", v(5), v(5), 3, v(6))
    A.valu("v_lshl_add_u32", v(5), KH, 6, v(5))
    A.valu("v_bfe_u32", v(7), LANE, 4, 1)
    A.valu("v_bfe_u32", v(8), LANE, 1, 1)
    A.valu("v_lshl_add_u32", v(7), v(7), 1, v(8))
    A.valu("v_lshl_add_u32", v(7), NH, 2, v(7))
    A.valu("v_bfe_u32", v(8), LANE, 3, 1)
    A.valu("v_lshlrev_b32", v(8), 2, v(8))
    A.valu("v_xor_b32", v(7), v(7), v(8))
    A.valu("v_lshlrev_b32", v(7), 4, v(7))
    A.valu("v_lshl_add_u32", WA, v(5), 7, v(7))
    A.valu("v_and_b32", v(8), 1, LANE)
    A.valu("v_lshl_add_u32", WA, v(8), 3, WA)
    A.valu("v_add_u32", WA, 65536, WA)
    ACC = v(32, 16)
    for i in range(16): A.valu("v_mov_b32", v(32+i), 0)
    def compute(stage):
        FB = 48
        for i in range(4):
            A.ds_read("ds_read_b128", v(FB + i*8, 4), OA[i], stage*16384)
            A.ds_read("ds_read_b64_tr_b16", v(FB + i*8 + 4, 2), WA, stage*16384 + i*2048)
            A.ds_read("ds_read_b64_tr_b16", v(FB + i*8 + 6, 2), WA, stage*16384 + i*2048 + 512)
        for i in range(4):
            A.wait(lgkm=3*(3-i))
            A.mfma(32, ACC, v(FB + i*8 + 4, 4), v(FB + i*8, 4), ACC)
    A.salu("s_mov_b32", s(38), 7)
    A.label("L_op_loop")
    for stg in range(4):
        A.wait(vm=8); A.barrier()
        issue((stg+3) % 4)
        compute(stg)
    A.salu("s_sub_u32", s(38), s(38), 1)
    A.raw("s_cmp_lg_u32 s38, 0")
    A.raw("s_cbranch_scc1 L_op_loop")
    A.wait(vm=8); A.barrier(); issue(3); compute(0)
    A.wait(vm=8); A.barrier(); compute(1)
    A.wait(vm=4); A.barrier(); compute(2)
    A.wait(vm=0); A.barrier(); compute(3)
    stamp(A, st)
    RA = v(17)
    A.valu("v_and_b32", v(5), 3, WV)
    A.valu("v_lshlrev_b32", RA, 12, v(5))
    A.valu("v_lshl_add_u32", RA, LANE, 4, RA)
    A.fence(12)
    A.raw("s_cmp_lt_u32 s19, 4")
    A.raw("s_cbranch_scc1 L_op_rd")
    for q in range(4): A.ds_write("ds_write_b128", RA, v(32+4*q, 4), q*1024)
    A.wait(lgkm=0)
    A.label("L_op_rd")
    A.barrier()
    A.raw("s_cmp_ge_u32 s19, 4")
    A.raw("s_cbranch_scc1 L_op_fin")
    for q in range(4): A.ds_read("ds_read_b128", v(48+4*q, 4), RA, q*1024)
    TW, TR = v(18), v(19)
    A.valu("v_and_b32", v(5), 31, LANE)
    A.valu("v_mul_u32_u24", v(5), 80, v(5))
    A.valu("v_lshrrev_b32", v(6), 5, LANE)
    A.valu("v_lshl_add_u32", v(5), v(6), 3, v(5))
    A.valu("v_lshl_add_u32", TW, WV, 12, v(5))
    A.valu("v_lshrrev_b32", v(5), 2, LANE)
    A.valu("v_and_b32", v(6), 3, LANE)
    A.valu("v_mul_u32_u24", v(7), 80, v(5))
    A.valu("v_lshl_add_u32", v(7), v(6), 4, v(7))
    A.valu("v_lshl_add_u32", TR, WV, 12, v(7))
    A.valu("v_lshl_add_u32", v(5), MH, 5, v(5))
    A.valu("v_mul_lo_u32", v(5), v(5), s(32))
    A.valu("v_lshl_add_u32", v(5), NH, 6, v(5))
    A.valu("v_lshl_add_u32", v(5), v(6), 4, v(5))
    A.wait(lgkm=0)
    for q in range(4):
        for e in range(4): A.valu("v_add_f32", v(32+4*q+e), v(32+4*q+e), v(48+4*q+e))
        A.valu("v_cvt_pk_bf16_f32", v(64+2*q), v(32+4*q), v(32+4*q+1))
        A.valu("v_cvt_pk_bf16_f32", v(64+2*q+1), v(32+4*q+2), v(32+4*q+3))
        A.ds_write("ds_write_b64", TW, v(64+2*q, 2), 16384 + q*16)
    A.wait(lgkm=0)
    A.ds_read("ds_read_b128", v(72, 4), TR, 16384)
    A.ds_read("ds_read_b128", v(76, 4), TR, 16384 + 16*80)
    A.salu("s_mov_b32", s(36), 16*1280)
    A.wait(lgkm=1)
    A.buf_store("buffer_store_dwordx4", v(72, 4), v(5), SO, 0)
    A.wait(lgkm=0)
    A.buf_store("buffer_store_dwordx4", v(76, 4), v(5), SO, s(36))
    A.label("L_op_fin")
    if STAMP:
        A.wait(vm=0)
        stamp(A, st)
        stamp_out(A, st, 37, "b")
    A.label("L_op_end")
    A.raw("s_endpgm")
    return A, name

def main(out):
    k1, n1 = kernel1()
    k2, n2 = kernel2()
    hdr = open("standalone__mha_block_cached__near_ridge.s.ref").read().split("; Override launch")[0]
    txt = hdr
    txt += f"; @launch kernel={n1} grid=(256,1,1) block=(256,1,1) lds=163840\n"
    txt += f"; @launch kernel={n2} grid=(240,1,1) block=(512,1,1) lds=131072\n"
    txt += '.amdgcn_target "amdgcn-amd-amdhsa--gfx950"\n.text\n'
    txt += k1.text() + k2.text()
    txt += '.section .rodata,"a"\n' + kd(n1, 512, 256) + kd(n2, 128, 128)
    open(out, "w").write(txt)
    print("k1 lines", len(k1.lines), "nops", k1.nops, "k2 lines", len(k2.lines), "nops", k2.nops)
main(sys.argv[1])
```
